```python
import torch

def _softmax(x, axis=-1):
    return torch.softmax(x, dim=axis)
def _gelu(x):
    return torch.nn.functional.gelu(x, approximate="tanh")
def _silu(x):
    return torch.nn.functional.silu(x)
def _sigmoid(x):
    return torch.sigmoid(x)
def _layernorm(x, axis=-1, eps=1e-5):
    m = x.mean(dim=axis, keepdim=True)
    v = x.var(dim=axis, keepdim=True, unbiased=False)
    return (x - m) / torch.sqrt(v + eps)
def _scatter_add(tgt, idx, src, axis=0):
    return tgt.clone().index_add_(axis, idx, src)
def _segment_sum(src, seg, n):
    out = torch.zeros((n,) + src.shape[1:], dtype=src.dtype)
    return out.index_add_(0, seg, src)
def _pad(x, pw):
    flat = tuple(v for pair in reversed(pw) for v in pair)
    return torch.nn.functional.pad(x, flat)

kernel_name = 'recurrent_scan__sliding_block_cached__dense_activation_gelu__decode'

def setup_inputs():

    _w = (lambda a: (lambda t: t.to(torch.bfloat16) if t.is_floating_point() else t)(torch.as_tensor(a)))
    def _A_setup():
        B, Sq, D = 1, 1, 640
        Hq, Hkv, Sk, Dh = 32, 32, 4096, 128
        assert Hq % Hkv == 0, (Hq, Hkv)
        return {
            "x": _w((lambda *s: torch.randn(*s, dtype=torch.bfloat16) * 0.05)(B, Sq, D)),
            "k_cache": _w((lambda *s: torch.randn(*s, dtype=torch.bfloat16) * 3.2)(B, Hkv, Sk, Dh)),
            "v_cache": _w((lambda *s: torch.randn(*s, dtype=torch.bfloat16) * 3.2)(B, Hkv, Sk, Dh)),
            "wq": _w((lambda *s: torch.randn(*s, dtype=torch.bfloat16) * 3.2)(D, Hq * Dh) * (D ** -0.5)),
            "wo": _w((lambda *s: torch.randn(*s, dtype=torch.bfloat16) * 3.2)(Hq * Dh, D) * ((Hq * Dh) ** -0.5)),
        }
    _A_in = _A_setup()

    def _B_setup():
        B, S, D, F = 1, 1, 640, 1728
        return {
            "x": _w((lambda *s: torch.randn(*s, dtype=torch.bfloat16) * 0.05)(B, S, D)),
            "w1": _w((lambda *s: torch.randn(*s, dtype=torch.bfloat16) * 3.2)(D, F) * (D ** -0.5)),
            "b1": _w((lambda *s: torch.randn(*s, dtype=torch.bfloat16) * 3.2)(F) * 0.01),
            "w2": _w((lambda *s: torch.randn(*s, dtype=torch.bfloat16) * 0.4)(F, D) * (F ** -0.5)),
            "b2": _w((lambda *s: torch.randn(*s, dtype=torch.bfloat16) * 0.4)(D) * 0.01),
        }
    _B_in = _B_setup()

    return {
        "A_x": _A_in["x"],
        "A_k_cache": _A_in["k_cache"],
        "A_v_cache": _A_in["v_cache"],
        "A_wq": _A_in["wq"],
        "A_wo": _A_in["wo"],
        "B_x": _B_in["x"],
        "B_w1": _B_in["w1"],
        "B_b1": _B_in["b1"],
        "B_w2": _B_in["w2"],
        "B_b2": _B_in["b2"],
    }

def reference(A_x, A_k_cache, A_v_cache, A_wq, A_wo, B_x, B_w1, B_b1, B_w2, B_b2):
    def _A_ref(x, k_cache, v_cache, wq, wo):
        B, Sq, D = x.shape
        Hq, Dh = 32, 128
        Hkv, Sk = k_cache.shape[1], k_cache.shape[2]
        W = min(4096, max(256, Sk // 4))
        rep = Hq // Hkv
        q = (lambda x, *d: x.permute(*d))((x @ wq).reshape(B, Sq, Hq, Dh), 0, 2, 1, 3)
        k = (lambda x, n, axis: torch.repeat_interleave(x, n, dim=axis))(k_cache[:, :, Sk - W:, :], rep, axis=1)
        v = (lambda x, n, axis: torch.repeat_interleave(x, n, dim=axis))(v_cache[:, :, Sk - W:, :], rep, axis=1)
        scores = torch.einsum("bhqd,bhkd->bhqk", q, k) * (Dh ** -0.5)
        p = _softmax(scores, axis=-1)
        o = torch.einsum("bhqk,bhkd->bhqd", p, v)
        return (lambda x, *d: x.permute(*d))(o, 0, 2, 1, 3).reshape(B, Sq, Hq * Dh) @ wo

    def _B_ref(x, w1, b1, w2, b2):
        h = torch.einsum("bsd,df->bsf", x, w1) + b1
        h = _gelu(h)
        return torch.einsum("bsf,fd->bsd", h, w2) + b2

    x = A_x
    xn = _layernorm(x, axis=-1)
    s = _A_ref(xn, A_k_cache, A_v_cache, A_wq, A_wo)
    g = _silu(_B_ref(xn, B_w1, B_b1, B_w2, B_b2))
    return x + s * g
```

```python
import re

REG_RE = re.compile(r'^(v|s|a)(\d+)$|^(v|s|a)\[(\d+):(\d+)\]$')

def regs_of(tok):
    tok = tok.strip()
    neg = False
    if tok.startswith('-'):
        tok = tok[1:]
    if tok.startswith('abs(') or tok.startswith('|'):
        tok = tok.strip('|')
        tok = tok.replace('abs(', '').replace(')', '')
    m = REG_RE.match(tok)
    if m:
        if m.group(1):
            return {(m.group(1), int(m.group(2)))}
        return {(m.group(3), k) for k in range(int(m.group(4)), int(m.group(5)) + 1)}
    if tok == 'vcc':
        return {('s', 106), ('s', 107)}
    if tok == 'vcc_lo':
        return {('s', 106)}
    if tok == 'vcc_hi':
        return {('s', 107)}
    if tok == 'exec':
        return {('s', 126), ('s', 127)}
    if tok == 'm0':
        return {('s', 124)}
    return set()

TRANS = ('v_exp_f32', 'v_log_f32', 'v_rcp_f32', 'v_rsq_f32', 'v_sqrt_f32', 'v_sin_f32', 'v_cos_f32')

class Ins:
    def __init__(self, text):
        self.text = text
        t = text.split(';')[0].strip()
        self.is_label = t.endswith(':')
        self.is_dir = t.startswith('.') or t == ''
        self.mn = ''
        self.w = set(); self.r = set()
        self.kind = 'other'
        self.dpp = False
        self.states = 1
        if self.is_label or self.is_dir:
            self.states = 0
            return
        parts = t.split(None, 1)
        mn = parts[0]
        self.mn = mn
        rest = parts[1] if len(parts) > 1 else ''
        ops = []
        cur = ''
        depth = 0
        for ch in rest:
            if ch in '[(':
                depth += 1
            if ch in '])':
                depth -= 1
            if ch == ',' and depth == 0:
                ops.append(cur.strip()); cur = ''
            else:
                cur += ch
        if cur.strip():
            ops.append(cur.strip())
        mods = ''
        if ops:
            sp = ops[-1].split(None, 1)
            if len(sp) > 1:
                ops[-1] = sp[0]; mods = sp[1]
        self.ops = ops; self.mods = mods
        if re.search(r'quad_perm|row_|wave_', mods):
            self.dpp = True
        R = regs_of
        if mn == 's_nop':
            self.kind = 'nop'; self.states = int(ops[0], 0) + 1
        elif mn.startswith('v_mfma'):
            self.kind = 'mfma'
            self.w = R(ops[0]); self.a = R(ops[1]); self.b = R(ops[2]); self.c = R(ops[3])
            self.r = self.a | self.b | self.c
            self.passes = 4 if '16x16x32' in mn or '16x16x16' in mn else (8 if ('32x32' in mn or '16x16x4_f32' in mn) else 4)
        elif mn.startswith('v_cmp'):
            self.kind = 'valu'
            self.w = R(ops[0])
            for o in ops[1:]: self.r |= R(o)
            if mn.startswith('v_cmpx'): self.w |= R('exec')
        elif mn.startswith('v_readfirstlane') or mn.startswith('v_readlane'):
            self.kind = 'valu'; self.rdlane = True
            self.w = R(ops[0])
            for o in ops[1:]: self.r |= R(o)
        elif mn.startswith('v_permlane'):
            self.kind = 'valu'; self.perml = True
            self.w = R(ops[0]) | R(ops[1]); self.r = set(self.w)
        elif mn.startswith('v_'):
            self.kind = 'valu'
            self.w = R(ops[0])
            k = 1
            if '_co_' in mn or mn.startswith('v_div_scale') or mn.startswith('v_mad_u64'):
                self.w |= R(ops[1]); k = 2
            for o in ops[k:]: self.r |= R(o)
            if mn.startswith(('v_fmac', 'v_dot2c', 'v_pk_fmac', 'v_writelane')) or self.dpp:
                self.r |= R(ops[0])
            if mn.startswith('v_cndmask') and len(ops) == 3:
                self.r |= R('vcc')
            if mn.startswith('v_div_fmas'):
                self.r |= R('vcc')
        elif mn.startswith(('global_load', 'buffer_load', 'flat_load')):
            self.kind = 'vmem'
            self.w = R(ops[0])
            for o in ops[1:]: self.r |= R(o)
        elif mn.startswith(('global_store', 'buffer_store', 'global_atomic', 'buffer_atomic')):
            self.kind = 'vmem'; self.store = True
            for o in ops: self.r |= R(o)
            if mn.startswith('global_store'):
                self.data = R(ops[1])
            else:
                self.data = R(ops[0])
            self.wide = 'x4' in mn or 'x3' in mn
        elif mn.startswith('ds_read') or mn.startswith('ds_bpermute') or mn.startswith('ds_swizzle'):
            self.kind = 'ds'
            self.w = R(ops[0])
            for o in ops[1:]: self.r |= R(o)
        elif mn.startswith('ds_'):
            self.kind = 'ds'
            for o in ops: self.r |= R(o)
        elif mn.startswith('s_'):
            self.kind = 'salu'
            if mn.startswith(('s_cmp', 's_cbranch', 's_branch', 's_waitcnt', 's_barrier', 's_endpgm', 's_sleep', 's_setprio', 's_bitcmp')):
                for o in ops: self.r |= R(o)
            else:
                if ops:
                    self.w = R(ops[0])
                for o in ops[1:]: self.r |= R(o)

def isv(s): return {x for x in s if x[0] == 'v' or x[0] == 'a'}
def iss(s): return {x for x in s if x[0] == 's'}

def required_gap(p, c):
    need = 0
    if p.kind == 'valu':
        pw_v = isv(p.w); pw_s = iss(p.w)
        if c.kind == 'mfma' and (pw_v & c.r): need = max(need, 2)
        if c.kind == 'valu':
            if c.dpp and (pw_v & c.r): need = max(need, 2)
            if getattr(c, 'perml', False) and (pw_v & c.r): need = max(need, 2)
            if getattr(c, 'rdlane', False):
                if pw_v & c.r: need = max(need, 1)
                if pw_s & c.r: need = max(need, 4)
            if pw_s & c.r: need = max(need, 2)
            if c.mn.startswith('v_div_fmas') and (pw_s & c.r): need = max(need, 4)
            if p.mn.startswith(TRANS) and (pw_v & c.r) and not c.mn.startswith(TRANS): need = max(need, 1)
            if p.mn.startswith(TRANS) and (pw_v & c.r): need = max(need, 1)
            if c.dpp and (('s', 126) in p.w): need = max(need, 5)
            if ('sdwa' in p.mods or 'op_sel' in p.mods) and (pw_v & (c.r | c.w)): need = max(need, 1)
        if c.kind == 'vmem' and (pw_s & c.r): need = max(need, 5)
        if c.kind == 'mfma' and (('s', 126) in p.w): need = max(need, 4)
    if p.kind == 'mfma':
        D = p.w
        n_other = {2: 5, 4: 8, 8: 12, 16: 20}[p.passes]
        n_ovl = {2: 4, 4: 6, 8: 10, 16: 18}[p.passes]
        if c.kind == 'mfma':
            if D & (c.a | c.b): need = max(need, n_other)
            if D & c.c:
                if c.c == D and c.passes == p.passes: pass
                else: need = max(need, n_ovl)
            if (D & c.w) and not (c.c == D): need = max(need, n_ovl)
        elif c.kind in ('valu', 'vmem', 'ds'):
            if D & (c.r | c.w): need = max(need, n_other)
        if c.kind == 'valu' and (p.c & c.w):
            need = max(need, {2: 1, 4: 3, 8: 7, 16: 15}[p.passes])
    if p.kind == 'vmem' and getattr(p, 'store', False) and getattr(p, 'wide', False):
        if c.kind == 'valu' and (p.data & c.w): need = max(need, 2)
        elif (p.data & c.w): need = max(need, 1)
    if p.kind == 'salu' and (('s', 124) in p.w):
        if c.kind == 'vmem' and 'lds' in c.mods: need = max(need, 1)
    return need

class Asm:
    def __init__(self):
        self.items = []
    def I(self, text):
        for ln in text.strip().split('\n'):
            ln = ln.strip()
            if ln:
                self.items.append(Ins(ln))
    def L(self, name):
        self.items.append(Ins(name + ':'))
    def C(self, text):
        self.items.append(Ins('; ' + text))
        self.items[-1].is_dir = True; self.items[-1].states = 0; self.items[-1].is_label = False
    def finish(self):
        out = []
        real = []
        nn = 0
        for it in self.items:
            if it.is_label or it.is_dir:
                out.append(it); continue
            need = 0
            dist = 0
            for p in reversed(real):
                g = required_gap(p, it)
                if g > dist:
                    need = max(need, g - dist)
                dist += p.states
                if dist >= 20: break
            if need > 0:
                nop = Ins('s_nop %d' % (need - 1))
                out.append(nop); real.append(nop); nn += 1
            out.append(it); real.append(it)
        self.nnops = nn
        return '\n'.join(('' if (x.is_label) else '    ') + x.text for x in out) + '\n'
```

```python
import sys, struct, argparse
from asmlib import Asm

NAME = "recurrent_scan__sliding_block_cached__dense_activation_gelu__decode"

def f32(x):
    return struct.unpack('<I', struct.pack('<f', x))[0]
def hx(x): return '0x%08x' % (x & 0xffffffff)

E1OFF = 0x1000
E2OFF = E1OFF + 32 * 16384
E3OFF = E2OFF + 32 * 16384
DBGOFF = E3OFF + 8 * 65536
LDS_RED1 = 0
LDS_RED3 = 8192
LDS_RED4 = 16384
LDS_RED4F = 24576 - 4096
LDS_Q = 32768
LDS_ML = 33024
LDS_BYTES = 33280
L2E = 1.4426950408889634

def gen(opt):
    A = Asm(); I = A.I
    stamps = opt.stamps
    def STAMP(k):
        if stamps:
            I(f"s_memrealtime s[{72+2*k}:{73+2*k}]")
    NT = ' nt' if opt.nt else ''
    sT, sT2, sW, sH, sC = 's31', 's32', 's33', 's34', 's35'
    vL, vG, vI_, vP = 'v1', 'v2', 'v3', 'v4'
    M = ['v8', 'v9', 'v10', 'v11']
    MP = ['v12', 'v13', 'v14', 'v15']
    vXA = 16; vXB = 20; vB1 = 21; vXO = 22
    vW = 24; vK = 40; vV = 56; vWO = 72; vW2 = 88; vPF = 104
    acc = 108; AF = [112, 116]
    vQ = 120
    vGa = 136
    vGb = 140
    (oXA, oXB, oW0, oW1, oW2_, oW3, oXO, oK, oV, oWO, oGat, oML, oRedW, oRedR, oRedH, oQW, oQR, oB1, oPF, oFin) = \
        ['v%d' % k for k in range(144, 164)]
    t = ['v%d' % k for k in range(164, 204)]
    tn = lambda k: 164 + k
    NVGPR = 208
    def vr(b, n=4): return f"v[{b}:{b+n-1}]"
    def v(b): return f"v{b}"

    retries = []
    STAMP(0)
    I("s_mov_b32 s99, 0")
    I("s_cmp_ge_u32 s2, 256")
    I("s_cbranch_scc1 L_end")
    I("s_load_dwordx16 s[4:19], s[0:1], 0")
    I("s_load_dwordx8 s[20:27], s[0:1], 64")
    I("s_load_dwordx2 s[28:29], s[0:1], 96")
    I("s_getpc_b64 s[66:67]")
    I(f"v_lshlrev_b32 {oPF}, 4, v0")
    I(f"v_min_u32 {oPF}, PFMAX, {oPF}")
    I(f"global_load_dwordx4 {vr(vPF)}, {oPF}, s[66:67]")
    I(f"v_and_b32 {vL}, 63, v0")
    I(f"v_lshrrev_b32 {t[0]}, 6, v0")
    I(f"v_readfirstlane_b32 {sW}, {t[0]}")
    I(f"s_and_b32 {sH}, s2, 31")
    I(f"s_lshr_b32 {sC}, s2, 5")
    I(f"v_lshrrev_b32 {vG}, 4, {vL}")
    I(f"v_and_b32 {vI_}, 15, {vL}")
    I(f"v_and_b32 {vP}, 7, {vL}")
    I(f"v_lshlrev_b32 {oXA}, 4, {vL}")
    I(f"v_lshlrev_b32 {oXB}, 2, {vL}")
    I(f"v_add_u32 {oXB}, 0x400, {oXB}")
    I(f"s_mul_i32 s3, {sC}, 80")
    I(f"s_lshl_b32 s68, {sW}, 4")
    I(f"s_add_u32 s68, s68, s3")
    I(f"s_sub_u32 s69, {sW}, 5")
    I(f"s_lshl_b32 s69, s69, 5")
    I(f"s_add_u32 s69, s69, s3")
    I(f"s_lshl_b32 s70, {sH}, 8")
    I(f"s_lshl_b32 s71, {sH}, 7")
    I(f"s_cmp_ge_u32 {sH}, 27")
    I(f"s_cselect_b32 s61, 2, 1")
    I(f"s_mov_b32 s38, 3456")
    I(f"s_cmp_lt_u32 {sW}, 5")
    I(f"s_cselect_b32 s61, 0, s61")
    I(f"s_cselect_b32 s68, s68, s69")
    I(f"s_cselect_b32 s70, s70, s71")
    I(f"s_cselect_b32 s38, 8192, s38")
    I(f"s_cselect_b32 s69, 15, 7")
    I(f"s_cselect_b32 s71, 4, 3")
    I(f"s_cmp_eq_u32 s61, 2")
    I(f"s_cselect_b32 s38, 0, s38")
    I(f"s_cselect_b32 s70, 0, s70")
    I(f"s_cselect_b32 s69, 0, s69")
    I(f"s_cmp_eq_u32 {sW}, 7")
    I(f"s_cselect_b32 s39, 3, 15")
    I(f"v_lshrrev_b32 {t[0]}, s71, {vL}")
    I(f"v_min_u32 {t[1]}, s39, {t[0]}")
    I(f"v_lshlrev_b32 {t[2]}, 2, {t[1]}")
    I(f"v_add_u32 {t[2]}, s68, {t[2]}")
    I(f"v_lshlrev_b32 {oXO}, 1, {t[2]}")
    I(f"v_mul_lo_u32 {oW0}, {t[2]}, s38")
    I(f"v_and_b32 {t[3]}, s69, {vL}")
    I(f"v_lshlrev_b32 {t[3]}, 4, {t[3]}")
    I(f"v_add3_u32 {oW0}, {oW0}, {t[3]}, s70")
    I(f"v_add_u32 {oW1}, s38, {oW0}")
    I(f"v_add_u32 {oW2_}, s38, {oW1}")
    I(f"v_add_u32 {oW3}, s38, {oW2_}")
    I(f"v_cmp_ge_u32 vcc, s39, {t[0]}")
    I(f"v_cndmask_b32 {t[4]}, 0, -1, vcc")
    I(f"s_cmp_eq_u32 s61, 2")
    I(f"s_cselect_b32 s3, 0, -1")
    I(f"v_and_b32 {t[4]}, s3, {t[4]}")
    I(f"v_and_b32 {t[5]}, 3, {vL}")
    I(f"v_lshlrev_b32 {t[5]}, 4, {t[5]}")
    I(f"v_mov_b32 {t[6]}, 0xffff")
    I(f"v_mov_b32 {t[7]}, 0")
    I(f"v_lshlrev_b64 v[{tn(6)}:{tn(7)}], {t[5]}, v[{tn(6)}:{tn(7)}]")
    I(f"v_cmp_gt_u32 vcc, 4, {vP}")
    I(f"v_cndmask_b32 {M[0]}, 0, {t[6]}, vcc")
    I(f"v_cndmask_b32 {M[1]}, 0, {t[7]}, vcc")
    I(f"v_cndmask_b32 {M[2]}, {t[6]}, 0, vcc")
    I(f"v_cndmask_b32 {M[3]}, {t[7]}, 0, vcc")
    for k in range(4):
        I(f"v_and_b32 {MP[k]}, {M[k]}, {t[4]}")
    I(f"v_lshlrev_b32 {oK}, 8, {vI_}")
    I(f"v_lshl_add_u32 {oK}, {vG}, 4, {oK}")
    I(f"v_lshlrev_b32 {oV}, 4, {vI_}")
    I(f"v_lshl_add_u32 {oV}, {vG}, 10, {oV}")
    I(f"v_min_u32 {t[0]}, 9, {vI_}")
    I(f"v_lshlrev_b32 {t[0]}, 4, {t[0]}")
    I(f"v_mul_u32_u24 {oWO}, 0x1400, {vG}")
    I(f"v_add_u32 {oWO}, {oWO}, {t[0]}")
    I(f"v_bfe_u32 {t[8]}, {vL}, 3, 1")
    I(f"v_lshlrev_b32 {oML}, 11, {vP}")
    I(f"s_lshl_b32 s3, {sW}, 7")
    I(f"v_lshl_add_u32 {oGat}, {vG}, 5, {oML}")
    I(f"v_lshl_add_u32 {oGat}, {t[8]}, 4, {oGat}")
    I(f"v_add_u32 {oGat}, s3, {oGat}")
    I(f"s_lshl_b32 s3, {sW}, 10")
    I(f"v_add_u32 {oRedW}, s3, {oXA}")
    I(f"v_and_b32 {t[0]}, 1, {vG}")
    I(f"v_lshlrev_b32 {t[0]}, 8, {t[0]}")
    I(f"v_lshrrev_b32 {t[1]}, 1, {vG}")
    I(f"v_lshl_add_u32 {t[0]}, {t[1]}, 4, {t[0]}")
    I(f"v_lshl_add_u32 {t[0]}, {t[8]}, 3, {t[0]}")
    I(f"s_lshl_b32 s3, {sW}, 5")
    I(f"v_lshl_add_u32 {oRedR}, {vP}, 10, {t[0]}")
    I(f"v_add_u32 {oRedR}, s3, {oRedR}")
    I(f"v_lshrrev_b32 {t[1]}, 1, {vP}")
    I(f"v_min_u32 {t[1]}, 2, {t[1]}")
    I(f"v_lshl_add_u32 {oRedH}, {t[1]}, 10, {t[0]}")
    I(f"v_and_b32 {t[1]}, 1, {vP}")
    I(f"v_mul_u32_u24 {t[1]}, 0x280, {t[1]}")
    I(f"s_and_b32 s3, {sW}, 3")
    I(f"s_lshl_b32 s3, s3, 5")
    I(f"s_add_u32 s3, s3, 5120")
    I(f"v_add3_u32 {oRedH}, {oRedH}, {t[1]}, s3")
    I(f"v_lshlrev_b32 {oQW}, 3, {vG}")
    I(f"v_lshl_add_u32 {oQW}, {t[8]}, 2, {oQW}")
    I(f"s_lshl_b32 s3, {sW}, 5")
    I(f"v_add_u32 {oQW}, s3, {oQW}")
    I(f"s_and_b32 s3, {sW}, 3")
    I(f"s_lshl_b32 s3, s3, 5")
    I(f"s_lshl_b32 s60, {sH}, 7")
    I(f"s_add_u32 s3, s3, s60")
    I(f"s_cmp_ge_u32 {sH}, 27")
    I(f"s_cselect_b32 s3, 0, s3")
    I(f"v_lshlrev_b32 {oB1}, 3, {vG}")
    I(f"v_lshl_add_u32 {oB1}, {t[8]}, 2, {oB1}")
    I(f"v_add_u32 {oB1}, s3, {oB1}")
    I(f"v_lshlrev_b32 {oQR}, 4, {vG}")
    I(f"v_and_b32 {t[0]}, 31, {vL}")
    I(f"v_lshlrev_b32 {oFin}, 11, {t[0]}")
    I(f"v_lshrrev_b32 {t[1]}, 5, {vL}")
    I(f"v_lshl_add_u32 {oFin}, {t[1]}, 4, {oFin}")
    I(f"s_lshl_b32 s3, {sH}, 5")
    I(f"v_add_u32 {oFin}, s3, {oFin}")
    I(f"s_lshl_b32 s40, {sH}, 20")
    I(f"s_lshl_b32 s3, {sC}, 15")
    I(f"s_add_u32 s40, s40, s3")
    I(f"s_lshl_b32 s3, {sW}, 12")
    I(f"s_add_u32 s40, s40, s3")
    I(f"s_add_u32 s40, s40, 786432")
    I(f"s_mul_i32 s44, {sH}, 163840")
    I(f"s_mul_i32 s3, {sW}, 20480")
    I(f"s_mul_i32 s45, {sC}, 160")
    I(f"s_add_u32 s3, s3, s45")
    I(f"s_add_u32 s44, s44, s3")
    I(f"s_min_u32 s46, {sH}, 26")
    I(f"s_mul_i32 s46, s46, 81920")
    I(f"s_add_u32 s46, s46, s3")
    I(f"s_sub_u32 s46, s46, 81920")
    I(f"s_lshl_b32 s48, {sH}, 14")
    I(f"s_lshl_b32 s50, {sC}, 11")
    I(f"s_lshl_b32 s58, {sC}, 16")
    I(f"s_lshl_b32 s56, {sH}, 11")
    I(f"s_mul_i32 s62, {sC}, 160")
    I(f"s_lshl_b32 s3, {sH}, 3")
    I(f"s_add_u32 s62, s62, s3")
    I(f"s_min_u32 s62, s62, 1272")
    I(f"v_mov_b32 {v(vGa)}, 0")
    I(f"v_mov_b32 {v(vGa+1)}, 0")
    I(f"v_mov_b32 {v(vGb)}, 0")
    I(f"v_mov_b32 {v(vGb+1)}, 0")
    I("s_waitcnt lgkmcnt(0)")
    STAMP(1)
    I(f"s_load_dword s30, s[28:29], 0")
    I(f"s_load_dword s63, s[4:5], 0")
    I(f"global_load_dwordx4 {vr(vXA)}, {oXA}, s[4:5]")
    I(f"global_load_dword {v(vXB)}, {oXB}, s[4:5]")
    I(f"global_load_dwordx2 {vr(vXO,2)}, {oXO}, s[4:5]")
    I(f"s_cmp_eq_u32 s61, 0")
    I(f"s_cselect_b64 s[36:37], s[10:11], s[16:17]")
    I(f"s_cmp_eq_u32 s61, 2")
    I(f"s_cselect_b64 s[36:37], s[4:5], s[36:37]")
    for k, o in enumerate([oW0, oW1, oW2_, oW3]):
        I(f"global_load_dwordx4 {vr(vW+4*k)}, {o}, s[36:37]{NT}")
    I(f"global_load_dword {v(vB1)}, {oB1}, s[18:19]")
    if opt.b0:
        I("s_barrier")
    I("s_add_u32 s42, s8, s40")
    I("s_addc_u32 s43, s9, 0")
    I("s_add_u32 s40, s6, s40")
    I("s_addc_u32 s41, s7, 0")
    def loadK():
        for k in range(4):
            I(f"global_load_dwordx4 {vr(vK+4*k)}, {oK}, s[40:41] offset:{64*k}{NT}")
    def loadV():
        for k in range(4):
            I(f"global_load_dwordx4 {vr(vV+4*k)}, {oV}, s[42:43] offset:{256*k}{NT}")
    def loadWO():
        for k in range(4):
            I(f"global_load_dwordx4 {vr(vWO+4*k)}, {oWO}, s[44:45] offset:{1280*k}{NT}")
    def loadW2(lbl):
        I(f"s_cmp_eq_u32 s47, 0")
        I(f"s_cbranch_scc1 {lbl}")
        for k in range(4):
            I(f"global_load_dwordx4 {vr(vW2+4*k)}, {oWO}, s[48:49] offset:{1280*k}{NT}")
        A.L(lbl)
    loadK()
    n_after_x = 4 + 1 + 4
    if opt.v_early:
        loadV(); n_after_x += 4
    I("s_mov_b32 s14, 0x1f1f1f1f")
    I("s_mov_b32 s15, 0x1f1f1f1f")
    I("s_add_u32 s44, s12, s44")
    I("s_addc_u32 s45, s13, 0")
    I("s_mov_b32 s3, s48")
    I("s_add_u32 s48, s20, s46")
    I("s_addc_u32 s49, s21, 0")
    I(f"s_cmp_ge_u32 {sW}, 4")
    I("s_cselect_b32 s47, 1, 0")
    I(f"s_cmp_ge_u32 {sH}, 27")
    I("s_cselect_b32 s47, 0, s47")
    I(f"s_add_u32 s52, s28, s3")
    I(f"s_addc_u32 s53, s29, 0")
    I(f"s_add_u32 s52, s52, {E1OFF}")
    I(f"s_addc_u32 s53, s53, 0")
    I(f"s_add_u32 s54, s52, s50")
    I(f"s_addc_u32 s55, s53, 0")
    I(f"s_add_u32 s58, s28, s58")
    I(f"s_addc_u32 s59, s29, 0")
    I(f"s_add_u32 s58, s58, {E3OFF}")
    I(f"s_addc_u32 s59, s59, 0")
    I(f"s_add_u32 s56, s58, s56")
    I(f"s_addc_u32 s57, s59, 0")
    I("s_load_dwordx2 s[64:65], s[4:5], s62")
    I("s_load_dwordx2 s[50:51], s[22:23], s62")
    I("s_waitcnt lgkmcnt(0)")
    I(f"s_mul_i32 {sT}, s30, 1664525")
    I(f"s_add_u32 {sT}, {sT}, 1013904223")
    I(f"s_mul_i32 {sT2}, {sT}, 0x2545f491")
    I(f"s_add_u32 {sT2}, {sT2}, 0x01234567")
    I("s_lshl_b32 s63, s63, 16")
    I(f"s_waitcnt vmcnt({n_after_x})")
    STAMP(2)
    src = [v(vXA), v(vXA+1), v(vXA+2), v(vXA+3), v(vXB)]
    d = t[0:10]
    for k, s in enumerate(src):
        I(f"v_lshlrev_b32 {d[2*k]}, 16, {s}")
        I(f"v_and_b32 {d[2*k+1]}, 0xffff0000, {s}")
    for k in range(10):
        I(f"v_subrev_f32 {d[k]}, s63, {d[k]}")
    S1, S2 = t[10], t[11]
    I(f"v_add_f32 {S1}, {d[0]}, {d[1]}")
    I(f"v_mul_f32 {S2}, {d[0]}, {d[0]}")
    I(f"v_fmac_f32 {S2}, {d[1]}, {d[1]}")
    for k in range(2, 10):
        I(f"v_add_f32 {S1}, {S1}, {d[k]}")
        I(f"v_fmac_f32 {S2}, {d[k]}, {d[k]}")
    def dpp_add(regs, ctrls):
        for c in ctrls:
            for r in regs:
                I(f"v_add_f32_dpp {r}, {r}, {r} {c} row_mask:0xf bank_mask:0xf")
    X1, X2, HM, RM = 'quad_perm:[1,0,3,2]', 'quad_perm:[2,3,0,1]', 'row_half_mirror', 'row_mirror'
    dpp_add([S1, S2], [X1, X2, HM, RM])
    def xrow(regs, tmps, op, which):
        for sw in which:
            for r, tm in zip(regs, tmps):
                I(f"v_mov_b32 {tm}, {r}")
            for r, tm in zip(regs, tmps):
                I(f"v_permlane{sw}_swap_b32 {r}, {tm}")
            for r, tm in zip(regs, tmps):
                I(f"{op} {r}, {r}, {tm}")
    xrow([S1, S2], [t[12], t[13]], 'v_add_f32', [16, 32])
    inv = hx(f32(1.0 / 640))
    I(f"v_mul_f32 {S1}, {inv}, {S1}")
    I(f"v_mul_f32 {S2}, {inv}, {S2}")
    I(f"v_fma_f32 {S2}, -{S1}, {S1}, {S2}")
    I(f"v_add_f32 {S1}, s63, {S1}")
    I(f"v_max_f32 {S2}, 0, {S2}")
    I(f"v_cvt_pk_bf16_f32 {t[12]}, {S1}, {S2}")
    I(f"v_and_b32 {S2}, 0xffff0000, {t[12]}")
    I(f"v_lshlrev_b32 {S1}, 16, {t[12]}")
    I(f"v_add_f32 {S2}, {hx(f32(1e-5))}, {S2}")
    I(f"v_cvt_pk_bf16_f32 {S2}, {S2}, {S2}")
    I(f"v_and_b32 {S2}, 0xffff0000, {S2}")
    I(f"v_sqrt_f32 {S2}, {S2}")
    I(f"v_cvt_pk_bf16_f32 {S2}, {S2}, {S2}")
    I(f"v_and_b32 {S2}, 0xffff0000, {S2}")
    I(f"v_rcp_f32 {S2}, {S2}")
    x4 = t[0:4]
    I(f"v_lshlrev_b32 {x4[0]}, 16, {v(vXO)}")
    I(f"v_and_b32 {x4[1]}, 0xffff0000, {v(vXO)}")
    I(f"v_lshlrev_b32 {x4[2]}, 16, {v(vXO+1)}")
    I(f"v_and_b32 {x4[3]}, 0xffff0000, {v(vXO+1)}")
    for k in range(4):
        I(f"v_sub_f32 {x4[k]}, {x4[k]}, {S1}")
    I(f"v_cvt_pk_bf16_f32 {t[4]}, {x4[0]}, {x4[1]}")
    I(f"v_cvt_pk_bf16_f32 {t[5]}, {x4[2]}, {x4[3]}")
    I(f"v_lshlrev_b32 {x4[0]}, 16, {t[4]}")
    I(f"v_and_b32 {x4[1]}, 0xffff0000, {t[4]}")
    I(f"v_lshlrev_b32 {x4[2]}, 16, {t[5]}")
    I(f"v_and_b32 {x4[3]}, 0xffff0000, {t[5]}")
    for k in range(4):
        I(f"v_mul_f32 {x4[k]}, {x4[k]}, {S2}")
    for k in range(4):
        I(f"v_cvt_pk_bf16_f32 {x4[k]}, {x4[k]}, {x4[k]}")
    def onehot_mfma(vals, masks, data, first_zero=True):
        for k in range(4):
            af = AF[k & 1]
            for j in range(4):
                I(f"v_and_b32 {v(af+j)}, {masks[j]}, {vals[k]}")
            c = '0' if (k == 0 and first_zero) else vr(acc)
            I(f"v_mfma_f32_16x16x32_bf16 {vr(acc)}, {vr(af)}, {vr(data+4*k)}, {c}")
    I(f"s_waitcnt vmcnt({n_after_x-4})")
    STAMP(3)
    onehot_mfma(x4, MP, vW)
    I(f"ds_write_b128 {oRedW}, {vr(acc)} offset:{LDS_RED1}")
    I("s_waitcnt lgkmcnt(0)")
    I("s_barrier")
    def make_granule(dst, a0, a1):
        I(f"v_mov_b32 {v(dst+2)}, {sT}")
        I(f"v_xor_b32 {v(dst+3)}, {v(dst)}, {v(dst+1)}")
        I(f"v_xor_b32 {v(dst+3)}, {sT2}, {v(dst+3)}")
    I("s_mov_b64 exec, s[14:15]")
    I(f"ds_read_b64 {vr(vGa,2)}, {oRedR} offset:{LDS_RED1}")
    I("s_mov_b32 s14, 0x3f3f3f3f")
    I("s_mov_b32 s15, 0x3f3f3f3f")
    I("s_mov_b64 exec, s[14:15]")
    I(f"ds_read_b64 {vr(vGb,2)}, {oRedH} offset:{LDS_RED1}")
    I("s_mov_b64 exec, -1")
    I("s_mov_b32 s14, 0x01010101")
    I("s_mov_b32 s15, 0x01010101")
    I("s_waitcnt lgkmcnt(0)")
    dpp_add([v(vGa), v(vGa+1), v(vGb), v(vGb+1)], [X1, X2, HM])
    make_granule(vGa, 0, 0)
    make_granule(vGb, 0, 0)
    I("s_mov_b64 exec, s[14:15]")
    I(f"global_store_dwordx4 {oGat}, {vr(vGa)}, s[54:55] sc1")
    I(f"s_cmp_ge_u32 {sW}, 4")
    I("s_cbranch_scc1 L_nohpub")
    I(f"global_store_dwordx4 {oGat}, {vr(vGb)}, s[54:55] offset:1024 sc1")
    A.L("L_nohpub")
    I("s_mov_b64 exec, -1")
    STAMP(4)
    if not opt.v_early:
        loadV()
    def check(g, tmp1, tmp2):
        I(f"v_xor_b32 {tmp1}, {v(g)}, {v(g+1)}")
        I(f"v_xor_b32 {tmp1}, {tmp1}, {v(g+3)}")
        I(f"v_xor_b32 {tmp1}, {sT2}, {tmp1}")
        I(f"v_xor_b32 {tmp2}, {sT}, {v(g+2)}")
        I(f"v_or_b32 {tmp2}, {tmp1}, {tmp2}")
    if opt.gate1:
        I(f"s_lshl_b32 s3, {sW}, 7")
        I(f"s_add_u32 s10, s52, s3")
        I(f"s_addc_u32 s11, s53, 0")
        A.L("L_p1")
        for p in range(8):
            I(f"s_load_dword s{4+p if p < 6 else 10+p}, s[10:11], {p*2048+8} glc")
        I("s_waitcnt lgkmcnt(0)")
        regs = [4+p if p < 6 else 10+p for p in range(8)]
        for r in regs:
            I(f"s_xor_b32 s{r}, s{r}, {sT}")
        for r in regs[1:]:
            I(f"s_or_b32 s{regs[0]}, s{regs[0]}, s{r}")
        I("s_cbranch_scc1 L_p1_retry")
        A.L("L_p1_ok")
        retries.append("L_p1")
        STAMP(12)
    A.L("L_g1")
    I(f"global_load_dwordx4 {vr(vGa)}, {oGat}, s[52:53] sc1")
    if stamps:
        I("s_add_u32 s100, s100, 1")
    I("s_waitcnt vmcnt(0)")
    check(vGa, t[0], t[1])
    I(f"v_cmp_ne_u32 vcc, 0, {t[1]}")
    I("s_cbranch_vccnz L_g1_retry")
    A.L("L_g1_ok")
    retries.append("L_g1")
    STAMP(5)
    loadWO()
    loadW2("L_now2")
    dpp_add([v(vGa), v(vGa+1)], [X1, X2, HM])
    I(f"v_cvt_pk_bf16_f32 {t[0]}, {v(vGa)}, {v(vGa+1)}")
    I(f"ds_write_b32 {oQW}, {t[0]} offset:{LDS_Q}")
    I("s_waitcnt lgkmcnt(0)")
    I("s_barrier")
    for s in range(4):
        I(f"ds_read_b128 {vr(vQ+4*s)}, {oQR} offset:{LDS_Q + 64*s}")
    for s in range(4):
        I(f"s_waitcnt lgkmcnt({3-s})")
        c = '0' if s == 0 else vr(acc)
        I(f"v_mfma_f32_16x16x32_bf16 {vr(acc)}, {vr(vK+4*s)}, {vr(vQ+4*s)}, {c}")
    sc = t[0:4]
    I(f"v_cvt_pk_bf16_f32 {t[4]}, {v(acc)}, {v(acc+1)}")
    I(f"v_cvt_pk_bf16_f32 {t[5]}, {v(acc+2)}, {v(acc+3)}")
    I(f"s_mov_b32 s3, {hx(f32(128 ** -0.5))}")
    def unpack2(dst0, dst1, srcp):
        I(f"v_lshlrev_b32 {dst0}, 16, {srcp}")
        I(f"v_and_b32 {dst1}, 0xffff0000, {srcp}")
    unpack2(sc[0], sc[1], t[4]); unpack2(sc[2], sc[3], t[5])
    for k in range(4):
        I(f"v_mul_f32 {sc[k]}, s3, {sc[k]}")
    I(f"v_cvt_pk_bf16_f32 {t[4]}, {sc[0]}, {sc[1]}")
    I(f"v_cvt_pk_bf16_f32 {t[5]}, {sc[2]}, {sc[3]}")
    unpack2(sc[0], sc[1], t[4]); unpack2(sc[2], sc[3], t[5])
    mx = t[6]
    I(f"v_max_f32 {mx}, {sc[0]}, {sc[1]}")
    I(f"v_max3_f32 {mx}, {mx}, {sc[2]}, {sc[3]}")
    xrow([mx], [t[7]], 'v_max_f32', [16, 32])
    I(f"s_mov_b32 s3, {hx(f32(L2E))}")
    for k in range(4):
        I(f"v_sub_f32 {sc[k]}, {sc[k]}, {mx}")
    for k in range(4):
        I(f"v_mul_f32 {sc[k]}, s3, {sc[k]}")
    for k in range(4):
        I(f"v_exp_f32 {sc[k]}, {sc[k]}")
    pd = t[8:12]
    for k in range(4):
        I(f"v_cvt_pk_bf16_f32 {pd[k]}, {sc[k]}, {sc[k]}")
    onehot_mfma(pd, M, vV)
    ls = t[7]
    I(f"v_add_f32 {ls}, {sc[0]}, {sc[1]}")
    I(f"v_add_f32 {t[12]}, {sc[2]}, {sc[3]}")
    I(f"v_add_f32 {ls}, {ls}, {t[12]}")
    xrow([ls], [t[12]], 'v_add_f32', [16, 32])
    I(f"ds_write_b128 {oRedW}, {vr(acc)} offset:{LDS_RED3}")
    I(f"s_lshl_b32 s3, {sW}, 3")
    I(f"v_mov_b32 {t[12]}, s3")
    I(f"ds_write_b64 {t[12]}, v[{tn(6)}:{tn(7)}] offset:{LDS_ML}")
    I("s_waitcnt lgkmcnt(0)")
    I("s_barrier")
    STAMP(6)
    I(f"ds_read_b64 {vr(vGa,2)}, {oRedR} offset:{LDS_RED3}")
    I(f"v_lshlrev_b32 {t[12]}, 3, {vP}")
    I(f"ds_read_b64 v[{tn(0)}:{tn(1)}], {t[12]} offset:{LDS_ML}")
    I("s_waitcnt lgkmcnt(0)")
    def weights(m, l, tmpM, e, divide):
        I(f"v_max_f32_dpp {tmpM}, {m}, {m} {X1} row_mask:0xf bank_mask:0xf")
        I(f"v_max_f32_dpp {tmpM}, {tmpM}, {tmpM} {X2} row_mask:0xf bank_mask:0xf")
        I(f"v_max_f32_dpp {tmpM}, {tmpM}, {tmpM} {HM} row_mask:0xf bank_mask:0xf")
        I(f"v_sub_f32 {e}, {m}, {tmpM}")
        I(f"v_mul_f32 {e}, {hx(f32(L2E))}, {e}")
        I(f"v_exp_f32 {e}, {e}")
        I(f"v_mul_f32 {l}, {l}, {e}")
    weights(t[0], t[1], t[2], t[3], False)
    I(f"v_mul_f32 {v(vGa)}, {v(vGa)}, {t[3]}")
    I(f"v_mul_f32 {v(vGa+1)}, {v(vGa+1)}, {t[3]}")
    dpp_add([v(vGa), v(vGa+1), t[1]], [X1, X2, HM])
    make_granule(vGa, 0, 0)
    I(f"v_mov_b32 {v(vGb)}, {t[2]}")
    I(f"v_mov_b32 {v(vGb+1)}, {t[1]}")
    make_granule(vGb, 0, 0)
    I(f"s_add_u32 s36, s52, {E2OFF-E1OFF}")
    I(f"s_addc_u32 s37, s53, 0")
    I(f"s_add_u32 s54, s54, {E2OFF-E1OFF}")
    I(f"s_addc_u32 s55, s55, 0")
    I("s_mov_b64 exec, s[14:15]")
    I(f"global_store_dwordx4 {oGat}, {vr(vGa)}, s[54:55] sc1")
    I(f"s_cmp_lg_u32 {sW}, 0")
    I("s_cbranch_scc1 L_nomlpub")
    I("s_mov_b64 exec, 1")
    I(f"global_store_dwordx4 {oML}, {vr(vGb)}, s[54:55] offset:1024 sc1")
    A.L("L_nomlpub")
    I("s_mov_b64 exec, -1")
    STAMP(7)
    I(f"s_cmp_eq_u32 s47, 0")
    I("s_cbranch_scc1 L_noffn")
    A.L("L_gh")
    I(f"global_load_dwordx4 {vr(vGa)}, {oGat}, s[52:53] offset:512 sc1")
    I("s_waitcnt vmcnt(0)")
    check(vGa, t[0], t[1])
    I(f"v_cmp_ne_u32 vcc, 0, {t[1]}")
    I("s_cbranch_vccnz L_gh_retry")
    A.L("L_gh_ok")
    retries.append("L_gh")
    dpp_add([v(vGa), v(vGa+1)], [X1, X2, HM])
    I(f"v_cvt_pk_bf16_f32 {t[0]}, {v(vGa)}, {v(vGa+1)}")
    unpack2(t[1], t[2], t[0])
    unpack2(t[3], t[4], v(vB1))
    I(f"v_add_f32 {t[1]}, {t[1]}, {t[3]}")
    I(f"v_add_f32 {t[2]}, {t[2]}, {t[4]}")
    I(f"v_cvt_pk_bf16_f32 {t[0]}, {t[1]}, {t[2]}")
    unpack2(t[1], t[2], t[0])
    k0 = 0.7978845608028654; k1 = 0.044715
    I(f"s_mov_b32 s3, {hx(f32(k1))}")
    I(f"s_mov_b32 s60, {hx(f32(-2.0 * L2E * k0))}")
    for a, b in ((t[1], t[3]), (t[2], t[4])):
        I(f"v_mul_f32 {b}, {a}, {a}")
        I(f"v_mul_f32 {b}, {b}, {a}")
        I(f"v_fma_f32 {b}, {b}, s3, {a}")
        I(f"v_mul_f32 {b}, s60, {b}")
        I(f"v_exp_f32 {b}, {b}")
        I(f"v_add_f32 {b}, 1.0, {b}")
        I(f"v_rcp_f32 {b}, {b}")
        I(f"v_mul_f32 {a}, {a}, {b}")
    def spread4(a0, a1, outs):
        I(f"v_cvt_pk_bf16_f32 {outs[0]}, {a0}, {a0}")
        I(f"v_cvt_pk_bf16_f32 {outs[1]}, {a1}, {a1}")
        I(f"v_mov_b32_dpp {outs[2]}, {outs[0]} row_ror:8 row_mask:0xf bank_mask:0xf")
        I(f"v_mov_b32_dpp {outs[3]}, {outs[1]} row_ror:8 row_mask:0xf bank_mask:0xf")
    spread4(t[1], t[2], pd)
    onehot_mfma(pd, M, vW2)
    I(f"ds_write_b128 {oRedW}, {vr(acc)} offset:{LDS_RED4F}")
    A.L("L_noffn")
    A.L("L_g2")
    I(f"global_load_dwordx4 {vr(vGa)}, {oGat}, s[36:37] sc1")
    I(f"global_load_dwordx4 {vr(vGb)}, {oML}, s[36:37] offset:1024 sc1")
    if stamps:
        I("s_add_u32 s101, s101, 1")
    I("s_waitcnt vmcnt(0)")
    check(vGa, t[0], t[1])
    check(vGb, t[2], t[3])
    I(f"v_or_b32 {t[1]}, {t[1]}, {t[3]}")
    I(f"v_cmp_ne_u32 vcc, 0, {t[1]}")
    I("s_cbranch_vccnz L_g2_retry")
    A.L("L_g2_ok")
    retries.append("L_g2")
    STAMP(8)
    weights(v(vGb), v(vGb+1), t[2], t[3], True)
    I(f"v_mul_f32 {v(vGa)}, {v(vGa)}, {t[3]}")
    I(f"v_mul_f32 {v(vGa+1)}, {v(vGa+1)}, {t[3]}")
    dpp_add([v(vGa), v(vGa+1), v(vGb+1)], [X1, X2, HM])
    I(f"v_rcp_f32 {t[4]}, {v(vGb+1)}")
    I(f"v_mul_f32 {v(vGa)}, {v(vGa)}, {t[4]}")
    I(f"v_mul_f32 {v(vGa+1)}, {v(vGa+1)}, {t[4]}")
    spread4(v(vGa), v(vGa+1), pd)
    onehot_mfma(pd, M, vWO)
    I(f"ds_write_b128 {oRedW}, {vr(acc)} offset:{LDS_RED4}")
    I("s_waitcnt lgkmcnt(0)")
    I("s_barrier")
    STAMP(9)
    I(f"s_cmp_ge_u32 {sW}, 5")
    I("s_cbranch_scc1 L_final")
    I(f"ds_read_b64 {vr(vGa,2)}, {oRedR} offset:{LDS_RED4}")
    I(f"v_mov_b32 {v(vGb)}, 0")
    I(f"v_mov_b32 {v(vGb+1)}, 0")
    I(f"s_cmp_ge_u32 {sH}, 27")
    I("s_cbranch_scc1 L_noyf")
    I("s_mov_b32 s68, 0xf0f0f0f0")
    I("s_mov_b32 s69, 0xf0f0f0f0")
    I("s_mov_b64 exec, s[68:69]")
    I(f"ds_read_b64 {vr(vGb,2)}, {oRedR} offset:{LDS_RED4F}")
    I("s_mov_b64 exec, -1")
    A.L("L_noyf")
    I("s_waitcnt lgkmcnt(0)")
    dpp_add([v(vGa), v(vGa+1), v(vGb), v(vGb+1)], [X1, X2, HM])
    make_granule(vGa, 0, 0)
    make_granule(vGb, 0, 0)
    I("s_mov_b64 exec, s[14:15]")
    I(f"global_store_dwordx4 {oGat}, {vr(vGa)}, s[56:57] sc1")
    I(f"global_store_dwordx4 {oGat}, {vr(vGb)}, s[56:57] offset:640 sc1")
    I("s_mov_b64 exec, -1")
    STAMP(10)
    I("s_branch L_fin_stamps")
    A.L("L_final")
    I(f"s_cmp_lg_u32 {sW}, 7")
    I("s_cbranch_scc1 L_fin_stamps")
    I(f"s_cmp_ge_u32 {sH}, 20")
    I("s_cbranch_scc1 L_fin_stamps")
    I(f"v_mov_b32 {v(vGb)}, 0")
    I(f"v_mov_b32 {v(vGb+1)}, 0")
    A.L("L_g3")
    I(f"global_load_dwordx4 {vr(vGa)}, {oFin}, s[58:59] sc1")
    I(f"global_load_dwordx4 {vr(vGb)}, {oFin}, s[58:59] offset:640 sc1")
    I("s_waitcnt vmcnt(0)")
    check(vGa, t[0], t[1])
    check(vGb, t[2], t[3])
    I(f"v_or_b32 {t[1]}, {t[1]}, {t[3]}")
    I(f"v_cmp_ne_u32 vcc, 0, {t[1]}")
    I("s_cbranch_vccnz L_g3_retry")
    A.L("L_g3_ok")
    retries.append("L_g3")
    STAMP(11)
    four = [v(vGa), v(vGa+1), v(vGb), v(vGb+1)]
    dpp_add(four, [X1, X2, HM, RM])
    xrow(four, t[0:4], 'v_add_f32', [16])
    I(f"v_mov_b32 {t[4]}, s64")
    I(f"v_mov_b32 {t[5]}, s50")
    I(f"v_mov_b32 {t[6]}, s65")
    I(f"v_mov_b32 {t[7]}, s51")
    I(f"v_cmp_gt_u32 vcc, 32, {vL}")
    I(f"v_cndmask_b32 {t[4]}, {t[6]}, {t[4]}, vcc")
    I(f"v_cndmask_b32 {t[5]}, {t[7]}, {t[5]}, vcc")
    I(f"v_cvt_pk_bf16_f32 {t[0]}, {v(vGb)}, {v(vGb+1)}")
    unpack2(t[1], t[2], t[0])
    unpack2(t[6], t[7], t[5])
    I(f"v_add_f32 {t[1]}, {t[1]}, {t[6]}")
    I(f"v_add_f32 {t[2]}, {t[2]}, {t[7]}")
    I(f"v_cvt_pk_bf16_f32 {t[0]}, {t[1]}, {t[2]}")
    unpack2(t[1], t[2], t[0])
    I(f"s_mov_b32 s3, {hx(f32(-L2E))}")
    for a, b in ((t[1], t[6]), (t[2], t[7])):
        I(f"v_mul_f32 {b}, s3, {a}")
        I(f"v_exp_f32 {b}, {b}")
        I(f"v_add_f32 {b}, 1.0, {b}")
        I(f"v_rcp_f32 {b}, {b}")
        I(f"v_mul_f32 {a}, {a}, {b}")
    I(f"v_cvt_pk_bf16_f32 {t[0]}, {t[1]}, {t[2]}")
    unpack2(t[1], t[2], t[0])
    I(f"v_cvt_pk_bf16_f32 {t[0]}, {v(vGa)}, {v(vGa+1)}")
    unpack2(t[6], t[7], t[0])
    I(f"v_mul_f32 {t[1]}, {t[1]}, {t[6]}")
    I(f"v_mul_f32 {t[2]}, {t[2]}, {t[7]}")
    I(f"v_cvt_pk_bf16_f32 {t[0]}, {t[1]}, {t[2]}")
    unpack2(t[1], t[2], t[0])
    unpack2(t[6], t[7], t[4])
    I(f"v_add_f32 {t[1]}, {t[1]}, {t[6]}")
    I(f"v_add_f32 {t[2]}, {t[2]}, {t[7]}")
    I(f"v_cvt_pk_bf16_f32 {t[0]}, {t[1]}, {t[2]}")
    I(f"v_lshrrev_b32 {t[1]}, 5, {vL}")
    I(f"v_lshlrev_b32 {t[1]}, 2, {t[1]}")
    I(f"v_add_u32 {t[1]}, s62, {t[1]}")
    I("s_mov_b32 s68, 1")
    I("s_mov_b32 s69, 1")
    I("s_mov_b64 exec, s[68:69]")
    I(f"global_store_dword {t[1]}, {t[0]}, s[24:25]")
    I("s_mov_b64 exec, -1")
    I("s_cmp_lg_u32 s2, 0")
    I("s_cbranch_scc1 L_fin_stamps")
    I("s_mov_b64 exec, 1")
    I(f"v_mov_b32 {t[2]}, 0")
    I(f"v_mov_b32 {t[3]}, {sT}")
    I(f"global_store_dword {t[2]}, {t[3]}, s[28:29] sc1")
    I("s_mov_b64 exec, -1")
    A.L("L_fin_stamps")
    if stamps:
        I("s_memrealtime s[70:71]")
        I("s_waitcnt lgkmcnt(0)")
        I(f"v_mov_b32 {t[0]}, 0")
        for k in range(13):
            I(f"v_writelane_b32 {t[0]}, s{72+2*k}, {k}")
        I(f"v_writelane_b32 {t[0]}, s70, 13")
        I(f"v_writelane_b32 {t[0]}, s100, 14")
        I(f"v_writelane_b32 {t[0]}, s101, 15")
        I(f"s_lshl_b32 s3, s2, 3")
        I(f"s_add_u32 s3, s3, {sW}")
        I(f"s_lshl_b32 s3, s3, 6")
        I(f"s_add_u32 s3, s3, {DBGOFF}")
        I(f"v_lshlrev_b32 {t[1]}, 2, {vL}")
        I(f"v_add_u32 {t[1]}, s3, {t[1]}")
        I("s_mov_b64 exec, 0xffff")
        I(f"global_store_dword {t[1]}, {t[0]}, s[28:29]")
    A.L("L_end")
    I("s_endpgm")
    for r in retries:
        A.L(r + "_retry")
        I("s_add_u32 s99, s99, 1")
        I(f"s_cmp_lt_u32 s99, {opt.spin}")
        I(f"s_cbranch_scc1 {r}")
        I(f"s_branch {r}_ok")
    body = A.finish()
    return body, NVGPR, A.nnops

HEADER = open('cdna_kernels/%s.s.ref' % NAME).read().split('; Override launch')[0]

def build(opt):
    body, nv, nn = gen(opt)
    pfmax = opt.pfmax
    body = body.replace('PFMAX', hex(pfmax))
    s = HEADER
    s += "; Override launch geometry by editing the next line (default: block=256,\n"
    s += f"; @launch grid=(256,1,1) block=(512,1,1) lds={LDS_BYTES}\n"
    s += '.amdgcn_target "amdgcn-amd-amdhsa--gfx950"\n.text\n'
    s += f".globl {NAME}_kernel\n.p2align 8\n.type {NAME}_kernel,@function\n{NAME}_kernel:\n"
    if opt.stamps:
        s += "    s_mov_b32 s100, 0\n    s_mov_b32 s101, 0\n"
        for k in range(13): s += "    s_mov_b32 s%d, 0\n" % (72 + 2 * k)
    s += body
    s += f""".section .rodata,"a"
.p2align 6
.amdhsa_kernel {NAME}_kernel
  .amdhsa_next_free_vgpr {nv}
  .amdhsa_next_free_sgpr 102
  .amdhsa_accum_offset {nv}
  .amdhsa_group_segment_fixed_size 0
  .amdhsa_kernarg_size 104
  .amdhsa_user_sgpr_count 2
  .amdhsa_user_sgpr_kernarg_segment_ptr 1
  .amdhsa_system_sgpr_workgroup_id_x 1
.end_amdhsa_kernel
"""
    return s, nn

if __name__ == '__main__':
    ap = argparse.ArgumentParser()
    ap.add_argument('-o', default='cdna_kernels/%s.s' % NAME)
    ap.add_argument('--stamps', type=int, default=0)
    ap.add_argument('--nt', type=int, default=1)
    ap.add_argument('--v_early', type=int, default=0)
    ap.add_argument('--b0', type=int, default=1)
    ap.add_argument('--gate1', type=int, default=1)
    ap.add_argument('--spin', type=int, default=200000)
    ap.add_argument('--pfmax', type=lambda x: int(x, 0), default=0x1400)
    opt = ap.parse_args()
    s, nn = build(opt)
    open(opt.o, 'w').write(s)
    print('wrote', opt.o, 'nops inserted', nn)
```
